```python
import torch

def _softmax(x, axis=-1):
    return torch.softmax(x, dim=axis)
def _gelu(x):
    return torch.nn.functional.gelu(x, approximate="tanh")
def _silu(x):
    return torch.nn.functional.silu(x)
def _sigmoid(x):
    return torch.sigmoid(x)
def _layernorm(x, axis=-1, eps=1e-5):
    m = x.mean(dim=axis, keepdim=True)
    v = x.var(dim=axis, keepdim=True, unbiased=False)
    return (x - m) / torch.sqrt(v + eps)
def _scatter_add(tgt, idx, src, axis=0):
    return tgt.clone().index_add_(axis, idx, src)
def _segment_sum(src, seg, n):
    out = torch.zeros((n,) + src.shape[1:], dtype=src.dtype)
    return out.index_add_(0, seg, src)
def _pad(x, pw):
    flat = tuple(v for pair in reversed(pw) for v in pair)
    return torch.nn.functional.pad(x, flat)

kernel_name = 'concat_heads__mha_block_cached__gqa_block_cached__near_ridge'

def setup_inputs():

    _w = (lambda a: (lambda t: t.to(torch.bfloat16) if t.is_floating_point() else t)(torch.as_tensor(a)))
    def _A_setup():
        B, Sq, D = 8, 288, 512
        H, Sk, Dh = 32, 1024, 128
        return {
            "x": _w((lambda *s: torch.randn(*s, dtype=torch.bfloat16) * 0.8)(B, Sq, D)),
            "k_cache": _w((lambda *s: torch.randn(*s, dtype=torch.bfloat16) * 0.8)(B, H, Sk, Dh)),
            "v_cache": _w((lambda *s: torch.randn(*s, dtype=torch.bfloat16) * 0.05)(B, H, Sk, Dh)),
            "wq": _w((lambda *s: torch.randn(*s, dtype=torch.bfloat16) * 0.8)(D, H * Dh) * (D ** -0.5)),
            "wo": _w((lambda *s: torch.randn(*s, dtype=torch.bfloat16) * 0.05)(H * Dh, D) * ((H * Dh) ** -0.5)),
        }
    _A_in = _A_setup()

    def _B_setup():
        B, Sq, D = 8, 288, 512
        Hq, Hkv, Sk, Dh = 32, 32, 1024, 128
        assert Hq % Hkv == 0, (Hq, Hkv)
        return {
            "x": _w((lambda *s: torch.randn(*s, dtype=torch.bfloat16) * 0.8)(B, Sq, D)),
            "k_cache": _w((lambda *s: torch.randn(*s, dtype=torch.bfloat16) * 0.8)(B, Hkv, Sk, Dh)),
            "v_cache": _w((lambda *s: torch.randn(*s, dtype=torch.bfloat16) * 0.05)(B, Hkv, Sk, Dh)),
            "wq": _w((lambda *s: torch.randn(*s, dtype=torch.bfloat16) * 0.8)(D, Hq * Dh) * (D ** -0.5)),
            "wo": _w((lambda *s: torch.randn(*s, dtype=torch.bfloat16) * 0.05)(Hq * Dh, D) * ((Hq * Dh) ** -0.5)),
        }
    _B_in = _B_setup()

    return {
        "A_x": _A_in["x"],
        "A_k_cache": _A_in["k_cache"],
        "A_v_cache": _A_in["v_cache"],
        "A_wq": _A_in["wq"],
        "A_wo": _A_in["wo"],
        "B_x": _B_in["x"],
        "B_k_cache": _B_in["k_cache"],
        "B_v_cache": _B_in["v_cache"],
        "B_wq": _B_in["wq"],
        "B_wo": _B_in["wo"],
    }

def reference(A_x, A_k_cache, A_v_cache, A_wq, A_wo, B_x, B_k_cache, B_v_cache, B_wq, B_wo):
    def _A_ref(x, k_cache, v_cache, wq, wo):
        B, Sq, D = x.shape
        H, Dh = 32, 128
        q = (lambda x, *d: x.permute(*d))((x @ wq).reshape(B, Sq, H, Dh), 0, 2, 1, 3)
        scores = torch.einsum("bhqd,bhkd->bhqk", q, k_cache) * (Dh ** -0.5)
        p = _softmax(scores, axis=-1)
        o = torch.einsum("bhqk,bhkd->bhqd", p, v_cache)
        return (lambda x, *d: x.permute(*d))(o, 0, 2, 1, 3).reshape(B, Sq, H * Dh) @ wo

    def _B_ref(x, k_cache, v_cache, wq, wo):
        B, Sq, D = x.shape
        Hq, Dh = 32, 128
        Hkv = k_cache.shape[1]
        rep = Hq // Hkv
        q = (lambda x, *d: x.permute(*d))((x @ wq).reshape(B, Sq, Hq, Dh), 0, 2, 1, 3)
        k = (lambda x, n, axis: torch.repeat_interleave(x, n, dim=axis))(k_cache, rep, axis=1)
        v = (lambda x, n, axis: torch.repeat_interleave(x, n, dim=axis))(v_cache, rep, axis=1)
        scores = torch.einsum("bhqd,bhkd->bhqk", q, k) * (Dh ** -0.5)
        p = _softmax(scores, axis=-1)
        o = torch.einsum("bhqk,bhkd->bhqd", p, v)
        return (lambda x, *d: x.permute(*d))(o, 0, 2, 1, 3).reshape(B, Sq, Hq * Dh) @ wo

    a = _A_ref(A_x, A_k_cache, A_v_cache, A_wq, A_wo)
    b = _B_ref(B_x, B_k_cache, B_v_cache, B_wq, B_wo)
    return torch.concatenate([a, b], axis=-1)
```

```python
import re

def _expand(tok):
    tok = tok.strip()
    neg = tok.lstrip("-")
    m = re.match(r"^abs\((.*)\)$", neg)
    if m: neg = m.group(1)
    neg = neg.strip("|")
    m = re.match(r"^([vas])\[(\d+):(\d+)\]$", neg)
    if m: return ["%s%d" % (m.group(1), i) for i in range(int(m.group(2)), int(m.group(3)) + 1)]
    m = re.match(r"^([vas])(\d+)$", neg)
    if m: return [neg]
    if neg in ("vcc", "m0", "exec", "scc"): return [neg]
    if neg in ("vcc_lo", "vcc_hi"): return ["vcc"]
    return []

TRANS = ("v_exp_f32", "v_rcp_f32", "v_log_f32", "v_rsq_f32", "v_sqrt_f32")

class I:
    __slots__ = ("text", "kind", "rd", "wr", "tag", "srcc", "ab", "want", "nops", "pre_lgkm", "pre_vm", "val", "comment")
    def __init__(self, text, tag=None, want=None, comment=None):
        self.text = text; self.tag = tag; self.want = want; self.nops = 0; self.pre_lgkm = None; self.pre_vm = None; self.val = None
        self.srcc = []; self.ab = []; self.comment = comment
        self.parse()
    def parse(self):
        t = self.text.strip()
        self.rd = []; self.wr = []
        if t.endswith(":"): self.kind = "label"; return
        if t.startswith("."): self.kind = "dir"; return
        if t in ("WAIT_LGKM", "WAIT_VM"): self.kind = t; return
        parts = t.split(None, 1)
        mn = parts[0]; rest = parts[1] if len(parts) > 1 else ""
        ops = [o.strip() for o in rest.split(",")] if rest else []
        mods = ""
        if ops:
            last = ops[-1].split(None, 1)
        mm = re.search(r"\s(offen|offset:|op_sel|neg_lo|neg_hi|nt\b|sc0\b|sc1\b|lds\b|row_|quad_perm|bank_mask|bound_ctrl|clamp|mul:|div:)", " " + rest)
        if mm:
            mods = (" " + rest)[mm.start():]; rest2 = (" " + rest)[:mm.start()]
            ops = [o.strip() for o in rest2.split(",") if o.strip()]
        E = _expand
        if mn.startswith("v_mfma"):
            self.kind = "mfma"; self.wr = E(ops[0]); self.ab = E(ops[1]) + E(ops[2]); self.srcc = E(ops[3]); self.rd = self.ab + self.srcc
            self.val = 8 if "32x32" in mn else 4
        elif mn.startswith("ds_read"):
            self.kind = "dsr"; self.wr = E(ops[0]); self.rd = E(ops[1])
        elif mn.startswith("ds_write"):
            self.kind = "dsw"; self.rd = sum((E(o) for o in ops), [])
        elif mn.startswith("buffer_load"):
            if " lds" in mods:
                self.kind = "dma"; self.rd = sum((E(o) for o in ops), []) + ["m0"]
            else:
                self.kind = "vld"; self.wr = E(ops[0]); self.rd = sum((E(o) for o in ops[1:]), [])
        elif mn.startswith("buffer_store"):
            self.kind = "vst"; self.rd = sum((E(o) for o in ops), []); self.ab = E(ops[0]); self.val = len(self.ab)
        elif mn == "s_nop": self.kind = "nop"; self.val = int(ops[0]) + 1
        elif mn == "s_waitcnt": self.kind = "wait"
        elif mn == "s_barrier": self.kind = "bar"
        elif mn.startswith("s_cbranch") or mn == "s_branch": self.kind = "br"
        elif mn in ("s_endpgm", "s_setprio", "s_sleep"): self.kind = "misc"
        elif mn.startswith("s_load") or mn in ("s_memtime", "s_memrealtime"):
            self.kind = "smem"; self.wr = E(ops[0]); self.rd = sum((E(o) for o in ops[1:]), [])
        elif mn.startswith("s_cmp"): self.kind = "salu"; self.rd = sum((E(o) for o in ops), [])
        elif mn.startswith("s_"):
            self.kind = "salu"; self.wr = E(ops[0]); self.rd = sum((E(o) for o in ops[1:]), [])
        elif mn.startswith("v_"):
            self.kind = "trans" if mn in TRANS else "valu"
            self.wr = E(ops[0]); self.rd = sum((E(o) for o in ops[1:]), [])
            if mn.startswith("v_permlane"): self.kind = "perm"; self.wr = E(ops[0]) + E(ops[1]); self.rd = list(self.wr)
            if mn.startswith("v_fmac"): self.rd += E(ops[0])
            if mn in ("v_readfirstlane_b32", "v_readlane_b32"): self.kind = "rfl"
            if mn == "v_cndmask_b32" and len(ops) == 3: self.rd.append("vcc")
        else:
            raise ValueError("unknown instruction: " + t)

VALUK = ("valu", "trans", "perm", "rfl")

class Prog:
    def __init__(self):
        self.code = []
        self.trace = []
    def add(self, text, **kw):
        i = text if isinstance(text, I) else I(text, **kw)
        self.code.append(i); return i
    def __call__(self, text, **kw): return self.add(text, **kw)
    def mark(self): return len(self.code)

def resolve(traces, verbose=True):
    auto = 0
    for tr in traces:
        lg = []
        vm = []
        smem_out = False
        for ins in tr:
            k = ins.kind
            if k in ("label", "dir"): continue
            touched = set(ins.rd) | set(ins.wr)
            if touched:
                need = None
                for idx, o in enumerate(lg):
                    if o.kind == "dsr" and touched & set(o.wr): need = idx
                    if o.kind == "dsw" and set(ins.wr) & set(o.rd) and False: need = idx
                if need is not None:
                    n = len(lg) - 1 - need
                    ins.pre_lgkm = n if ins.pre_lgkm is None else min(ins.pre_lgkm, n)
                need = None
                for idx, o in enumerate(vm):
                    if o.kind == "vld" and touched & set(o.wr): need = idx
                if need is not None:
                    n = len(vm) - 1 - need
                    ins.pre_vm = n if ins.pre_vm is None else min(ins.pre_vm, n)
            if ins.pre_lgkm is not None: lg = lg[len(lg) - ins.pre_lgkm:] if ins.pre_lgkm < len(lg) else lg
            if ins.pre_lgkm == 0: lg = []
            if ins.pre_vm is not None: vm = vm[len(vm) - ins.pre_vm:] if ins.pre_vm < len(vm) else vm
            if ins.pre_vm == 0: vm = []
            if k == "WAIT_LGKM" or k == "WAIT_VM":
                q = lg if k == "WAIT_LGKM" else vm
                want = ins.want
                need = None
                for idx, o in enumerate(q):
                    if want is None or want(o): need = idx
                if need is not None:
                    n = len(q) - 1 - need
                    ins.val = n if ins.val is None else min(ins.val, n)
                    q2 = q[len(q) - n:] if n > 0 else []
                    if k == "WAIT_LGKM": lg = q2
                    else: vm = q2
            elif k == "wait":
                m = re.search(r"lgkmcnt\((\d+)\)", ins.text)
                if m:
                    n = int(m.group(1)); lg = lg[len(lg) - n:] if 0 < n < len(lg) else ([] if n == 0 else lg)
                m = re.search(r"vmcnt\((\d+)\)", ins.text)
                if m:
                    n = int(m.group(1)); vm = vm[len(vm) - n:] if 0 < n < len(vm) else ([] if n == 0 else vm)
            elif k in ("dsr", "dsw"):
                lg.append(ins)
                assert len(lg) <= 64
            elif k in ("vld", "vst", "dma"):
                vm.append(ins)
    seen = set()
    for tr in traces:
        for ins in tr:
            if id(ins) in seen: continue
            seen.add(id(ins))
            if ins.kind == "WAIT_LGKM": ins.val = 15 if ins.val is None else min(ins.val, 15)
            if ins.kind == "WAIT_VM": ins.val = 63 if ins.val is None else min(ins.val, 63)
            if ins.pre_lgkm is not None: ins.pre_lgkm = min(ins.pre_lgkm, 15); auto += 1
            if ins.pre_vm is not None: ins.pre_vm = min(ins.pre_vm, 63); auto += 1
    def states(ins):
        n = 0
        if ins.kind in ("label", "dir"): return 0
        n += ins.val if ins.kind == "nop" else 1
        return n
    def pre_states(ins):
        n = ins.nops
        if ins.pre_lgkm is not None or ins.pre_vm is not None: n += 1
        return n
    changed = True; rounds = 0
    while changed:
        changed = False; rounds += 1
        for tr in traces:
            hist = []
            pos = 0
            for ins in tr:
                if ins.kind in ("label", "dir"): continue
                pos += pre_states(ins)
                need = 0
                rd = set(ins.rd); wr = set(ins.wr); k = ins.kind
                for (p, o) in reversed(hist):
                    d = pos - p
                    if d >= 20: break
                    req = 0
                    ow = set(o.wr)
                    if o.kind in VALUK:
                        vw = {r for r in ow if r[0] in "va"}
                        sw = {r for r in ow if r[0] == "s" or r in ("vcc", "exec")}
                        if k == "mfma" and vw & rd: req = max(req, 2)
                        if k == "perm" and vw & rd: req = max(req, 2)
                        if k == "rfl" and vw & rd: req = max(req, 1)
                        if o.kind == "trans" and k in ("valu", "perm", "rfl") and vw & (rd | wr): req = max(req, 1)
                        if k in ("vld", "vst", "dma") and sw & rd: req = max(req, 5)
                        if k in VALUK and sw & rd: req = max(req, 2)
                        if k in ("salu", "br") and sw: req = max(req, 1 if not (sw & rd or k == "br") else 4)
                        if "exec" in sw and k == "mfma": req = max(req, 4)
                    if o.kind == "mfma":
                        big = o.val == 8
                        if k == "mfma":
                            if ow & set(ins.ab): req = max(req, 12 if big else 8)
                            if ow & set(ins.srcc):
                                if not (ins.srcc == o.wr and ins.val == o.val): req = max(req, 10 if big else 6)
                            elif ow & wr: req = max(req, 12 if big else 8)
                        elif k in VALUK + ("vld", "vst", "dma", "dsr", "dsw"):
                            if ow & (rd | wr): req = max(req, 12 if big else 8)
                            if set(o.srcc) & wr: req = max(req, 7 if big else 3)
                    if o.kind == "salu" and "m0" in ow and k == "dma": req = max(req, 1)
                    if o.kind == "vst" and o.val > 2 and set(o.ab) & wr: req = max(req, 2)
                    if o.kind == "dsw" and set(o.rd) & wr: req = max(req, 2)
                    if req > d: need = max(need, req - d)
                if need > 0:
                    ins.nops += need; pos += need; changed = True
                pos += states(ins)
                hist.append((pos, ins))
                if len(hist) > 40: hist = hist[-30:]
        assert rounds < 20
    return auto

def emit(code):
    out = []
    for ins in code:
        if ins.kind in ("label", "dir"): out.append(ins.text); continue
        n = ins.nops
        while n > 0:
            k = min(n, 16); out.append("    s_nop %d" % (k - 1)); n -= k
        if ins.pre_lgkm is not None or ins.pre_vm is not None:
            w = []
            if ins.pre_vm is not None: w.append("vmcnt(%d)" % ins.pre_vm)
            if ins.pre_lgkm is not None: w.append("lgkmcnt(%d)" % ins.pre_lgkm)
            out.append("    s_waitcnt " + " ".join(w))
        if ins.kind == "WAIT_LGKM": out.append("    s_waitcnt lgkmcnt(%d)" % ins.val)
        elif ins.kind == "WAIT_VM": out.append("    s_waitcnt vmcnt(%d)" % ins.val)
        else: out.append("    " + ins.text + (("   ; " + ins.comment) if ins.comment else ""))
    return out

def stats(code, name=""):
    nn = sum(i.nops for i in code); aw = sum(1 for i in code if i.pre_lgkm is not None or i.pre_vm is not None)
    nm = sum(1 for i in code if i.kind == "mfma")
    cyc = 0; gap = None; lastvalu = -100; t = 0; pipe_free = 0; last_ds = False
    seq = []
    for i in code:
        if i.kind in ("label", "dir"): continue
        if i.nops: seq.append(("nop", i.nops))
        if i.pre_lgkm is not None or i.pre_vm is not None: seq.append(("wait", 1))
        seq.append((i.kind, i.val))
    prev = None
    for k, v in seq:
        if k == "mfma":
            t = max(t, pipe_free); pipe_free = t + 4 * v; t += 8
        elif k in ("dsr", "dsw", "vld", "vst", "dma"):
            t = max(t, lastvalu + 8)
            if prev in ("dsr", "dsw", "vld", "vst", "dma"): t += 4
            t += 8 if k in ("dma", "vld", "vst") else (16 if k == "dsw" else 4)
        elif k == "nop": t += 4 * v
        elif k in ("trans", "perm"): t += 8; lastvalu = t
        elif k in ("valu", "rfl"): t += 4; lastvalu = t
        else: t += 4
        prev = k
    print("%-14s instrs=%d mfma=%d nops=%d autowaits=%d est_cycles=%d" % (name, len(seq), nm, nn, aw, max(t, pipe_free)))
```

```python
import sys, argparse
from asmfw import I, Prog, resolve, emit, stats

NAME = "concat_heads__mha_block_cached__gqa_block_cached__near_ridge"
K1 = "attn_kernel"
K2 = "oproj_kernel"
WS_Q = 40 << 20
WS_PROF = 96 << 20
GRP_O = 18 * 32 * 4096
WG_Q = 147456
SCALE_BITS = 0x3E0293EE
import struct, math
SCALE_BITS = struct.unpack("<I", struct.pack("<f", math.log2(math.e) / math.sqrt(128.0)))[0]

class Opt:
    rs_mfma = 5
    prof = False
    nt_kv = True
    nt_xw = False
    lead = 16
    bar_off = 25
    k2_nt = False
    force_fb = False
O = Opt()

def R(f, b, n=1): return "%s%d" % (f, b) if n == 1 else "%s[%d:%d]" % (f, b, b + n - 1)
def mf(d, a, b, c): return "v_mfma_f32_16x16x32_bf16 %s, %s, %s, %s" % (d, a, b, c)

class Item:
    def __init__(self, cls, fn, at, name="", after=(), last=False):
        self.cls = cls; self.fn = fn; self.at = at; self.name = name; self.after = after; self.pos = None; self.last = last
class Sched:
    def __init__(self, period):
        self.P = period
        self.slots = [[] for _ in range(period)]
    def fits(self, g, cls):
        s = self.slots[g % self.P]
        cl = [x.cls for x in s]
        if "exp" in cl or "dma" in cl: return False
        if cls in ("exp", "dma"): return len(cl) == 0
        if len(cl) >= 2: return False
        if cls in ("ds", "bar"): return not ("ds" in cl or "bar" in cl)
        return True
    def place(self, it, force=False):
        g = it.at
        for a in it.after: g = max(g, a.pos + 1)
        n = 0
        while not self.fits(g, it.cls):
            g += 1; n += 1
            assert n < self.P, "no room for " + it.name
        it.pos = g
        self.slots[g % self.P].append(it)
        return it
    def place_before(self, it, limit):
        g = limit
        n = 0
        while not self.fits(g, it.cls):
            g -= 1; n += 1
            assert n < self.P
        for a in it.after: assert g > a.pos, ("order", it.name)
        it.pos = g
        self.slots[g % self.P].append(it)
        return it
    def gap_items(self, g):
        order = {"bar": 1, "ds": 1, "dma": 1, "exp": 1, "light": 2, "prebar": 0}
        return sorted(self.slots[g], key=lambda x: (order[x.cls], x.last, x.pos))

sK, sV, sX, sW, sO, sQ = 4, 8, 12, 16, 20, 24
sWV, sW4K, sKOFF, sVOFF, sCNT, sHEAD, sEXACT, sT0, sT1, sW1K, sXC, sWC, sSCALE, sOA, sOB, sQOFF, sQPART, sBND = 28, 29, 30, 31, 32, 33, 34, 35, 36, 37, 38, 39, 66, 68, 69, 70, 71, 72
sPROF = 76
sFL = 74
def KA(s, hf): return 8 + 2 * s + hf
def VA(dt, hf): return 16 + 2 * dt + hf
def DK(i): return 32 + i
def DV(p): return 36 + p
vL16 = 38
vXCH = 39
def LV(qt): return 40 + qt
def NEGM(qt): return 44 + 4 * qt
def QF(qt, s): return (64 + 16 * qt + 4 * s)
def SB(b): return 144 + 4 * b
def PF(buf, qt, hf): return 160 + 36 * buf + (8 * qt + 4 * hf if qt < 4 else 32)
def OA(qt, dt): return (32 * qt + 4 * dt) if qt < 4 else 128 + 4 * dt
def LA(qt): return 160 + 4 * qt
aONES = 180
def KF(b, s): return 184 + 16 * b + 4 * s
def VF(b, hf): return 216 + 8 * b + 4 * hf
LDS_MISC = 131072
QS = [0, 94208]
def XA(ks, sl): return 224 + 2 * ks + sl
def XE(ks, sl): return 228 + 2 * ks + sl
def WA(s, sl): return 232 + 2 * s + sl
vDX, vDW = 240, 241
def QACC(head, qt, s, t):
    if qt == 4: return ("v", 192 + 16 * head + 8 * s + 4 * t)
    if head == 0: return ("v", 64 + 32 * qt + 8 * s + 4 * t)
    return ("a", 32 * qt + 8 * s + 4 * t)
def XF(buf, qt, ks): return 128 + 40 * buf + 8 * qt + 4 * ks
def WF(b, ks): return 208 + 8 * b + 4 * ks

def stamp(p, idx):
    if not O.prof: return
    p("s_memtime s[80:81]"); p("s_waitcnt lgkmcnt(0)")
    p("v_mov_b32 v6, s80"); p("v_mov_b32 v7, 0")
    p("buffer_store_dword v6, v7, s[76:79], 0 offen offset:%d" % (4 * idx), tag="prof")

def common_head(p, label, ngrid=256):
    p(".globl %s" % label); p(".p2align 8"); p(".type %s,@function" % label); p("%s:" % label)
    p("s_cmp_ge_u32 s2, %d" % ngrid); p("s_cbranch_scc1 %s_end" % label)
    p("s_load_dwordx16 s[40:55], s[0:1], 0")
    p("s_load_dwordx4 s[56:59], s[0:1], 64")
    p("s_load_dwordx2 s[60:61], s[0:1], 80")
    p("s_load_dwordx2 s[64:65], s[0:1], 96")
    p("s_and_b32 s3, s2, 7"); p("s_lshl_b32 s3, s3, 1"); p("s_lshr_b32 s35, s2, 7"); p("s_add_u32 s3, s3, s35")
    p("s_lshr_b32 s62, s2, 3"); p("s_and_b32 s62, s62, 15")
    p("s_and_b32 s63, s3, 7")
    p("v_lshrrev_b32 v1, 6, v0"); p("v_and_b32 v0, 63, v0")
    p("v_readfirstlane_b32 s%d, v1" % sWV)
    p("v_and_b32 v2, 15, v0")
    p("v_lshrrev_b32 v3, 4, v0")
    p("v_lshrrev_b32 v4, 2, v2")
    p("v_and_b32 v5, 3, v2")
    p("s_waitcnt lgkmcnt(0)")

def srd(p, d, lo, hi, off, nrec):
    p("s_add_u32 s%d, s%d, %s" % (d, lo, off)); p("s_addc_u32 s%d, s%d, 0" % (d + 1, hi))
    p("s_mov_b32 s%d, %s" % (d + 2, nrec)); p("s_mov_b32 s%d, 0x20000" % (d + 3))

def kv_dma(p, which, slot, tagged=True):
    fl = " nt" if O.nt_kv else ""
    base = (0 if which == "K" else 65536) + slot * 16384
    p("s_add_u32 m0, s%d, %d" % (sW4K, base))
    for ii in range(4):
        va = DK(ii) if which == "K" else DV(ii & 1)
        p("buffer_load_dwordx4 v%d, %s, s%d offen offset:%d%s lds" % (va, R("s", sK if which == "K" else sV, 4), sKOFF if which == "K" else sVOFF, 1024 * ii, fl), tag="%s%d" % (which, slot))
    r = sKOFF if which == "K" else sVOFF
    p("s_add_u32 s%d, s%d, 16384" % (r, r))

def build_qproj_sched():
    M = []
    for head in range(2):
        for s in range(4):
            for t in range(2):
                for qt in list(range(4)) + ([4] if s < 2 else []):
                    for ks in range(2): M.append((head, s, t, qt, ks))
    P = len(M); assert P == 144
    S = Sched(P)
    first = {}; last = {}
    for g, (head, s, t, qt, ks) in enumerate(M):
        b = head * 8 + s * 2 + t
        first.setdefault(b, g); last[b] = g
    BAR = P - 18
    fl = " nt" if O.nt_xw else ""
    w1 = S.place(Item("light", lambda c: I("WAIT_LGKM"), BAR - P - 1, "wl"))
    w2 = S.place(Item("light", lambda c: I("WAIT_VM", want=(lambda o, sl=c % 2: o.tag == "Q%d" % sl)), BAR - P - 1, "wv", last=True))
    assert w1.pos == w2.pos == BAR - P - 1
    bar = S.place(Item("bar", lambda c: I("s_barrier"), BAR - P, "bar"))
    assert bar.pos == BAR - P
    reads = []
    for b in range(16):
        head, s, t = b // 8, (b // 2) % 4, b % 2
        for ks in range(2):
            for half in range(2):
                reads.append((first[b] + ks * 0.1 + half * 0.01, "w", b, head, s, t, ks, half))
    for qt in range(5):
        for ks in range(2):
            reads.append((2 * qt + ks * 0.1 + 0.05, "x", qt, ks))
    reads.sort()
    prev = bar; lastread = {}
    for r in reads:
        if r[1] == "w":
            _, _, b, head, s, t, ks, half = r
            at = max(min(first[b] - O.lead, BAR - 9 - 4 * (16 - b)), (last[b - 4] if b >= 4 else last[b + 12] - P) + 1, bar.pos + 1)
            fn = lambda c, b=b, head=head, s=s, t=t, ks=ks, half=half: I("ds_read_b64_tr_b16 %s, v%d offset:%d" % (R("a", WF(b % 4, ks) + 2 * half, 2), WA(s, c % 2), head * 16384 + ks * 8192 + half * 1024 + 8 * t), tag="w%d" % b)
            key = ("w", b)
        else:
            _, _, qt, ks = r
            at = bar.pos + 1
            fn = lambda c, qt=qt, ks=ks: I("ds_read_b128 %s, v%d offset:%d" % (R("a", XF(c % 2, qt, ks), 4), XA(ks, c % 2) if qt < 4 else XE(ks, c % 2), qt * 2048 if qt < 4 else 0), tag="x%d" % qt)
            key = ("x", qt)
        it = S.place(Item("ds", fn, at, str(r), after=(prev,)))
        prev = it; lastread[key] = it
        assert it.pos < BAR - 4, ("late read", r, it.pos)
    for b in range(16):
        tags = {"w%d" % b} | ({"x0"} if b == 0 else set())
        it = S.place_before(Item("light", lambda c, tags=tags: I("WAIT_LGKM", want=lambda o: o.tag in tags), 0, "w", after=(lastread[("w", b)],), last=True), first[b] - 1)
    for qt in range(1, 5):
        S.place_before(Item("light", lambda c, qt=qt: I("WAIT_LGKM", want=lambda o: o.tag == "x%d" % qt), 0, "wx", after=(lastread[("x", qt)],), last=True), 2 * qt - 1)
    dm = []
    for jj in range(9): dm.append(("x", jj))
    for head in range(2):
        for jj in range(4): dm.append(("w", head, jj))
    order = [dm[9], dm[0], dm[10], dm[1], dm[11], dm[2], dm[12], dm[3], dm[13], dm[4], dm[14], dm[5], dm[15], dm[6], dm[16], dm[7], dm[8]]
    g = 0; prev = None; dmaitems = []
    for d in order:
        if d[0] == "x":
            jj = d[1]
            f0 = lambda c, jj=jj: I("s_add_u32 m0, s%d, %d" % (sW1K, QS[(c + 1) % 2] + jj * 4096))
            f1 = lambda c, jj=jj: I("s_add_u32 s%d, s%d, %d" % (sT0, sXC, jj * 32768))
            f2 = lambda c: I("buffer_load_dwordx4 v%d, %s, s%d offen%s lds" % (vDX, R("s", sX, 4), sT0, fl), tag="Q%d" % ((c + 1) % 2))
        else:
            _, head, jj = d
            f0 = lambda c, jj=jj, head=head: I("s_add_u32 m0, s%d, %d" % (sW1K, QS[(c + 1) % 2] + 36864 + head * 16384 + jj * 4096))
            f1 = lambda c, jj=jj, head=head: I("s_add_u32 s%d, s%d, %d" % (sT0, sWC, jj * 16 * 8192 + head * 256))
            f2 = lambda c: I("buffer_load_dwordx4 v%d, %s, s%d offen%s lds" % (vDW, R("s", sW, 4), sT0, fl), tag="Q%d" % ((c + 1) % 2))
        aft = (prev,) if prev else ()
        a = S.place(Item("light", f0, g, "m0", after=aft)); b = S.place(Item("light", f1, g, "so", after=aft))
        c_ = S.place(Item("dma", f2, g, "dma", after=(a, b)))
        prev = c_; dmaitems += [a, b, c_]
    a = S.place(Item("light", lambda c: I("s_add_u32 s%d, s%d, 128" % (sXC, sXC)), 0, "xc", after=(prev,)))
    b = S.place(Item("light", lambda c: I("s_add_u32 s%d, s%d, %d" % (sWC, sWC, 64 * 8192)), 0, "wc", after=(prev,)))
    dmaitems += [a, b]
    assert b.pos < BAR - 2
    print("qproj: last dma at gap", prev.pos)
    return M, S, set(id(x) for x in dmaitems)

def emit_qproj_body(p, M, S, dmaids, c, final=False, extra=None):
    P = S.P
    for g, (head, s, t, qt, ks) in enumerate(M):
        f, r = QACC(head, qt, s, t)
        b = head * 8 + s * 2 + t
        p(mf(R(f, r, 4), R("a", WF(b % 4, ks), 4), R("a", XF(c % 2, qt, ks), 4), R(f, r, 4)))
        for it in S.gap_items(g):
            off = -(it.pos // P)
            if final and (off == 1 or id(it) in dmaids): continue
            p(it.fn(c + off))
        if extra and g in extra: extra[g]()

def qproj_prologue_items(p, S):
    its = [it for sl in S.slots for it in sl if it.pos < 0]
    order = {"bar": 1, "ds": 1, "dma": 1, "exp": 1, "light": 2}
    its.sort(key=lambda x: (x.pos, order[x.cls], x.last))
    for it in its: p(it.fn(0))

def build_attn_sched():
    chains = []
    for kt in range(4):
        for qt in list(range(4)) + ([4] if kt < 2 else []): chains.append((kt, qt))
    groups = []
    for dp in range(4):
        a, b = 2 * dp, 2 * dp + 1
        groups.append([("pv", a, 0, 0), ("pv", a, 0, 1), ("pv", a, 1, 0), ("pv", a, 1, 1)])
        groups.append([("pv", a, 2, 0), ("pv", a, 2, 1), ("pv", a, 3, 0), ("pv", a, 3, 1)])
        rs = []
        rsq = [0, 1, 2, 3] if O.rs_mfma == 9 else ([0, 1] if O.rs_mfma == 5 else [])
        if O.rs_mfma == 9: rs = [("rs", 0, dp, 0), ("rs", 0, dp, 1)] + ([("rs", 0, 4, 0)] if dp == 1 else [])
        elif O.rs_mfma == 5: rs = {0: [("rs", 0, 0, 0), ("rs", 0, 0, 1)], 1: [("rs", 0, 4, 0)], 2: [("rs", 0, 1, 0), ("rs", 0, 1, 1)], 3: []}[dp]
        groups.append([("pv", a, 4, 0), ("pv", b, 4, 0)] + rs)
        groups.append([("pv", b, 0, 0), ("pv", b, 0, 1), ("pv", b, 1, 0), ("pv", b, 1, 1)])
        groups.append([("pv", b, 2, 0), ("pv", b, 2, 1), ("pv", b, 3, 0), ("pv", b, 3, 1)])
    tot = sum(len(g) for g in groups)
    ev = [(c / 18.0, 0, ("c", c)) for c in range(18)]
    cum = 0
    for k, g in enumerate(groups):
        ev.append((cum / float(tot) + 1e-6, 1, ("g", k))); cum += len(g)
    ev.sort()
    M = []
    for _, _, (ty, k) in ev:
        if ty == "c":
            kt, qt = chains[k]
            for s in range(4): M.append(("qk", k, kt, qt, s))
        else: M += groups[k]
    P = len(M)
    S = Sched(P)
    cfirst = {}; clast = {}; kfirst = {}; klast = {}; vfirst = {}; vlast = {}; pfirst = {}
    for g, m in enumerate(M):
        if m[0] == "qk":
            cfirst.setdefault(m[1], g); clast[m[1]] = g; kfirst.setdefault(m[2], g); klast[m[2]] = g
        else:
            if m[0] == "pv": vfirst.setdefault(m[1], g); vlast[m[1]] = g
            pfirst.setdefault((m[2], m[3]), g)
    BAR = P - O.bar_off
    grp = {}
    def tagit(it, g): grp[id(it)] = g; return it
    w1 = tagit(S.place(Item("light", lambda i: I("WAIT_LGKM"), BAR - P - 1, "wl")), "bar")
    w2 = tagit(S.place(Item("light", lambda i: I("WAIT_VM", want=(lambda o, a="K%d" % (i % 4), b="V%d" % ((i - 1) % 4): o.tag in (a, b))), BAR - P - 1, "wv", last=True)), "bar")
    bar = tagit(S.place(Item("bar", lambda i: I("s_barrier"), BAR - P, "bar")), "bar")
    reads = []
    for kt in range(4):
        for s in range(4): reads.append((kfirst[kt] + 0.1 * s, "k", kt, s))
    for dt in range(8):
        for hf in range(2):
            for h2 in range(2): reads.append((vfirst[dt] + 0.1 * hf + 0.01 * h2 + 0.05, "v", dt, hf, h2))
    reads.sort()
    exps = {}
    valu_rs = [] if O.rs_mfma == 9 else ([2, 3] if O.rs_mfma == 5 else [0, 1, 2, 3, 4])
    prev = None
    for c, (kt, qt) in enumerate(chains):
        for r in range(4):
            fn = lambda i, c=c, r=r: I("v_exp_f32 v%d, v%d" % (SB((18 * i + c) % 4) + r, SB((18 * i + c) % 4) + r))
            it = tagit(S.place(Item("exp", fn, clast[c] + 5 + 2 * r, "exp")), "qk")
            exps[(c, r)] = it
    prev = bar; lastread = {}
    for r in reads:
        if r[1] == "k":
            _, _, kt, s = r
            at = max(kfirst[kt] - O.lead - 4, (klast[kt - 2] if kt >= 2 else klast[kt + 2] - P) + 1, bar.pos + 1)
            fn = lambda i, kt=kt, s=s: I("ds_read_b128 %s, v%d offset:%d" % (R("a", KF(kt % 2, s), 4), KA(s, kt // 2), (kt % 2) * 4096 + (i % 4) * 16384), tag="k%d" % kt)
            key = ("k", kt); gname = "kread"
        else:
            _, _, dt, hf, h2 = r
            at = max(vfirst[dt] - O.lead - 4, (vlast[dt - 4] if dt >= 4 else vlast[dt + 4] - P) + 1, bar.pos + 1)
            fn = lambda i, dt=dt, hf=hf, h2=h2: I("ds_read_b64_tr_b16 %s, v%d offset:%d" % (R("a", VF(dt % 4, hf) + 2 * h2, 2), VA(dt, hf), h2 * 4096 + ((i - 1) % 4) * 16384), tag="v%d" % dt)
            key = ("v", dt); gname = "vread"
        it = tagit(S.place(Item("ds", fn, at, str(r), after=(prev,))), gname)
        prev = it; lastread[key] = it
        assert it.pos < BAR - 4, ("late read", r, it.pos)
    for kt in range(4):
        it = tagit(S.place_before(Item("light", lambda i, kt=kt: I("WAIT_LGKM", want=lambda o: o.tag == "k%d" % kt), 0, "wk", after=(lastread[("k", kt)],), last=True), kfirst[kt] - 1), "kread")
        print("  k%d: last read gap %d, wait %d, first use %d" % (kt, lastread[("k", kt)].pos, it.pos, kfirst[kt]))
    for dt in range(8):
        it = tagit(S.place_before(Item("light", lambda i, dt=dt: I("WAIT_LGKM", want=lambda o: o.tag == "v%d" % dt), 0, "wv", after=(lastread[("v", dt)],), last=True), vfirst[dt] - 1), "vread")
        print("  v%d: last read gap %d, wait %d, first use %d" % (dt, lastread[("v", dt)].pos, it.pos, vfirst[dt]))
    fl = " nt" if O.nt_kv else ""
    prev = None; g = 2
    for which in ("V", "K"):
        ahead = 2 if which == "V" else 3
        base = 65536 if which == "V" else 0
        a = tagit(S.place(Item("light", lambda i, ahead=ahead, base=base: I("s_add_u32 m0, s%d, %d" % (sW4K, base + ((i + ahead) % 4) * 16384)), g, "m0", after=(prev,) if prev else ())), "dma")
        prev = a
        for ii in range(4):
            va = DK(ii) if which == "K" else DV(ii & 1)
            fn = lambda i, va=va, ii=ii, which=which, ahead=ahead: I("buffer_load_dwordx4 v%d, %s, s%d offen offset:%d%s lds" % (va, R("s", sK if which == "K" else sV, 4), sKOFF if which == "K" else sVOFF, 1024 * ii, fl), tag="%s%d" % (which, (i + ahead) % 4))
            prev = tagit(S.place(Item("dma", fn, g, "dma", after=(prev,))), "dma")
            g = prev.pos + 8
        r = sKOFF if which == "K" else sVOFF
        tagit(S.place(Item("light", lambda i, r=r: I("s_add_u32 s%d, s%d, 16384" % (r, r)), 0, "inc", after=(prev,))), "dma")
    assert prev.pos < BAR - 2
    def nxt_of(c): return cfirst[c + 4] if c + 4 < 18 else cfirst[c + 4 - 18] + P
    for c, (kt, qt) in enumerate(chains):
        for h in range(2):
            fn = lambda i, c=c, h=h, kt=kt, qt=qt: I("v_cvt_pk_bf16_f32 v%d, v%d, v%d" % (PF(i % 2, qt, kt // 2) + 2 * (kt % 2) + h, SB((18 * i + c) % 4) + 2 * h, SB((18 * i + c) % 4) + 2 * h + 1))
            it = tagit(S.place(Item("light", fn, 0, "cvt", after=(exps[(c, 2 * h)], exps[(c, 2 * h + 1)]))), "qk")
            assert it.pos < P + pfirst[(qt, kt // 2)] - 1, ("P late", c, it.pos)
            assert it.pos < nxt_of(c), ("S reuse", c)
    over = 0
    for c, (kt, qt) in enumerate(chains):
        if qt in valu_rs:
            for r in range(4):
                fn = lambda i, c=c, r=r, qt=qt: I("v_add_f32 v%d, v%d, v%d" % (LV(qt % 4), LV(qt % 4), SB((18 * i + c) % 4) + r))
                it = tagit(Item("light", fn, 0, "add"), "qk")
                lo = exps[(c, r)].pos + 1; hi = nxt_of(c) - 1
                g = next((g for g in range(lo, hi + 1) if S.fits(g, "light")), None)
                if g is None:
                    over += 1
                    g = min((g for g in range(lo, hi + 1) if not any(x.cls in ("dma", "bar") for x in S.slots[g % P])), key=lambda g: sum(2 if x.cls == "exp" else 1 for x in S.slots[g % P]))
                it.pos = g; S.slots[g % P].append(it)
    print("attn: overflowed adds", over)
    free = sum(1 for s in S.slots if len(s) == 0); half = sum(1 for s in S.slots if len(s) == 1 and s[0].cls in ("ds", "light", "bar"))
    print("attn: period", P, "empty gaps", free, "half gaps", half)
    return M, S, grp, chains

def emit_attn_body(p, M, S, grp, i, mode="full", hooks=None):
    P = S.P
    for g, m in enumerate(M):
        if m[0] == "qk":
            if mode != "tail":
                _, c, kt, qt, s = m
                sb = R("v", SB((18 * i + c) % 4), 4)
                p(mf(sb, R("a", KF(kt % 2, s), 4), R("v", QF(qt, s), 4), R("v", NEGM(qt), 4) if s == 0 else sb))
        elif mode != "first":
            _, dt, qt, hf = m
            pb = R("v", PF((i - 1) % 2, qt, hf), 4)
            if m[0] == "pv":
                o = R("a", OA(qt, dt), 4)
                p(mf(o, R("a", VF(dt % 4, hf), 4), pb, o))
            else:
                o = R("a", LA(qt), 4)
                p(mf(o, R("a", aONES, 4), pb, o))
        for it in S.gap_items(g):
            off = -(it.pos // P); gn = grp[id(it)]
            if mode == "first":
                if off == -1: continue
                if off == 0 and gn in ("vread", "dma"): continue
            if mode == "tail":
                if off == 1: continue
                if off == 0 and gn in ("qk", "kread"): continue
            p(it.fn(i + off))
        if hooks and g in hooks: hooks[g]()

def rowmax_to_negm(p, src, qt):
    t = 7
    p("v_mov_b32 v%d, v%d" % (t, src))
    p("v_permlane32_swap_b32 v%d, v%d" % (src, t))
    p("v_max_f32 v%d, v%d, v%d" % (src, src, t))
    p("v_mov_b32 v%d, v%d" % (t, src))
    p("v_permlane16_swap_b32 v%d, v%d" % (src, t))
    p("v_max_f32 v%d, v%d, v%d" % (src, src, t))
    for r in range(4): p("v_sub_f32 v%d, 0, v%d" % (NEGM(qt) + r, src))

def load_q(p):
    for f in range(16):
        if f % 4 == 0: p("s_add_u32 s%d, s%d, %d" % (sT1, sQOFF, 1024 * f))
        p("buffer_load_dwordx4 %s, v%d, %s, s%d offen offset:%d" % (R("v", 64 + 4 * f, 4), vL16, R("s", sQ, 4), sT1, 1024 * (f % 4)), tag="q")
    p("s_add_u32 s%d, s%d, %d" % (sT1, sQOFF, 16384))
    for f in range(2): p("buffer_load_dwordx4 %s, v%d, %s, s%d offen offset:%d" % (R("v", QF(4, f), 4), vL16, R("s", sQ, 4), sT1, 1024 * f), tag="q")
    p("s_add_u32 s%d, s%d, %d" % (sT1, sQPART, 16384))
    for f in range(2): p("buffer_load_dwordx4 %s, v%d, %s, s%d offen offset:%d" % (R("v", QF(4, 2 + f), 4), vL16, R("s", sQ, 4), sT1, 1024 * f), tag="q")

def gen_k1():
    p = Prog()
    common_head(p, K1)
    p("s_cmp_ge_u32 s3, 8")
    p("s_cselect_b64 s[40:41], s[50:51], s[40:41]"); p("s_cselect_b64 s[42:43], s[52:53], s[42:43]")
    p("s_cselect_b64 s[44:45], s[54:55], s[44:45]"); p("s_cselect_b64 s[46:47], s[56:57], s[46:47]")
    p("s_mul_i32 s35, s63, 294912"); srd(p, sX, 40, 41, "s35", 294912)
    p("s_lshl_b32 s35, s62, 9"); p("s_sub_u32 s36, %d, s35" % (512 * 8192)); srd(p, sW, 46, 47, "s35", "s36")
    p("s_lshl_b32 s%d, s%d, 10" % (sW1K, sWV)); p("s_lshl_b32 s%d, s%d, 12" % (sW4K, sWV))
    p("v_lshrrev_b32 v6, 3, v0"); p("v_lshlrev_b32 v6, 10, v6")
    p("v_and_b32 v7, 1, v1"); p("v_lshlrev_b32 v7, 2, v7"); p("v_add_u32 v7, v7, v3")
    p("v_and_b32 v8, 7, v0"); p("v_xor_b32 v7, v7, v8"); p("v_lshl_add_u32 v6, v7, 4, v6")
    p("v_lshl_add_u32 v%d, v1, 13, v6" % vDX)
    p("v_lshlrev_b32 v6, 2, v3"); p("v_xor_b32 v6, v6, v2"); p("v_lshlrev_b32 v6, 4, v6"); p("v_lshl_add_u32 v6, v3, 13, v6")
    p("v_lshl_add_u32 v%d, v1, 15, v6" % vDW)
    fl = " nt" if O.nt_xw else ""
    for jj in range(9):
        if jj < 8:
            head, j2 = jj // 4, jj % 4
            p("s_add_u32 m0, s%d, %d" % (sW1K, QS[0] + 36864 + head * 16384 + j2 * 4096)); p("s_mov_b32 s%d, %d" % (sT0, j2 * 16 * 8192 + head * 256))
            p("buffer_load_dwordx4 v%d, %s, s%d offen%s lds" % (vDW, R("s", sW, 4), sT0, fl), tag="Q0")
        p("s_add_u32 m0, s%d, %d" % (sW1K, QS[0] + jj * 4096)); p("s_mov_b32 s%d, %d" % (sT0, jj * 32768))
        p("buffer_load_dwordx4 v%d, %s, s%d offen%s lds" % (vDX, R("s", sX, 4), sT0, fl), tag="Q0")
    p("s_mov_b32 s%d, 128" % sXC); p("s_mov_b32 s%d, %d" % (sWC, 64 * 8192))
    p("s_lshl_b32 s35, s63, 4"); p("s_add_u32 s35, s35, s62"); p("s_lshl_b32 s35, s35, 19")
    srd(p, sK, 42, 43, "s35", 524288); srd(p, sV, 44, 45, "s35", 524288)
    p("s_mul_i32 s35, s3, %d" % GRP_O); srd(p, sO, 64, 65, "s35", GRP_O)
    p("s_mul_i32 s35, s2, %d" % WG_Q); p("s_add_u32 s35, s35, %d" % WS_Q); srd(p, sQ, 64, 65, "s35", WG_Q)
    if O.prof:
        p("s_lshl_b32 s35, s2, 2"); p("s_add_u32 s35, s35, s%d" % sWV); p("s_lshl_b32 s35, s35, 8"); p("s_add_u32 s35, s35, %d" % WS_PROF); srd(p, sPROF, 64, 65, "s35", 256)
    stamp(p, 0)
    p("s_mov_b32 s%d, s%d" % (sKOFF, sW4K)); p("s_mov_b32 s%d, s%d" % (sVOFF, sW4K))
    p("s_mov_b32 s%d, 0x%x" % (sSCALE, SCALE_BITS)); p("s_mov_b32 s%d, 0x%x" % (sSCALE + 1, SCALE_BITS))
    p("s_mov_b32 s%d, 0x53800000" % sBND)
    p("s_mov_b32 s%d, 0" % sHEAD); p("s_mov_b32 s%d, 0" % sEXACT)
    p("v_lshrrev_b32 v242, 1, v1")
    p("v_lshlrev_b32 v%d, 4, v0" % vL16)
    for hf in range(2):
        p("v_xor_b32 v6, %d, v242" % hf); p("v_lshl_add_u32 v6, v6, 5, v2"); p("v_lshlrev_b32 v6, 8, v6")
        for s in range(4):
            p("v_lshlrev_b32 v7, 1, v242"); p("v_xor_b32 v7, %d, v7" % s); p("v_lshl_add_u32 v7, v7, 2, v3"); p("v_xor_b32 v7, v7, v2")
            p("v_lshl_add_u32 v%d, v7, 4, v6" % KA(s, hf))
    p("v_and_b32 v243, 1, v3"); p("v_lshl_add_u32 v243, v243, 2, v4")
    p("v_lshlrev_b32 v244, 2, v242"); p("v_xor_b32 v243, v243, v244")
    for hf in range(2):
        p("v_xor_b32 v6, %d, v242" % hf); p("v_lshlrev_b32 v6, 5, v6"); p("v_lshl_add_u32 v6, v3, 2, v6"); p("v_add_u32 v6, v6, v4"); p("v_lshlrev_b32 v6, 8, v6")
        p("v_lshl_add_u32 v6, v5, 3, v6"); p("v_add_u32 v6, 0x10000, v6")
        for dt in range(8):
            p("v_xor_b32 v7, %d, v243" % dt); p("v_lshl_add_u32 v%d, v7, 5, v6" % VA(dt, hf))
    for ii in range(4):
        p("v_add_u32 v7, %d, v3" % (4 * ii)); p("v_xor_b32 v7, v7, v2"); p("v_lshlrev_b32 v7, 4, v7"); p("v_lshl_add_u32 v%d, v3, 8, v7" % DK(ii))
    for pp in range(2):
        p("v_add_u32 v7, %d, v3" % (4 * pp)); p("v_lshlrev_b32 v7, 1, v7"); p("v_xor_b32 v7, v7, v2"); p("v_lshlrev_b32 v7, 4, v7"); p("v_lshl_add_u32 v%d, v3, 8, v7" % DV(pp))
    p("v_mul_u32_u24 v6, 5120, v1"); p("v_add_u32 v6, v6, v%d" % vL16); p("v_add_u32 v%d, %d, v6" % (vXCH, LDS_MISC))
    p("v_lshrrev_b32 v244, 1, v2")
    for ks in range(2):
        p("v_add_u32 v7, %d, v3" % (4 * ks)); p("v_xor_b32 v7, v7, v244"); p("v_lshlrev_b32 v7, 4, v7"); p("v_lshl_add_u32 v7, v2, 7, v7")
        p("v_lshl_add_u32 v6, v1, 13, v7")
        for sl in range(2): p("v_add_u32 v%d, %d, v6" % (XA(ks, sl), QS[sl]))
        p("v_and_b32 v6, 1, v1"); p("v_lshl_add_u32 v6, v6, 11, v7")
        for sl in range(2): p("v_add_u32 v%d, %d, v6" % (XE(ks, sl), QS[sl] + 256 * 128))
    p("v_lshl_add_u32 v6, v3, 3, v4"); p("v_lshlrev_b32 v6, 8, v6"); p("v_lshl_add_u32 v6, v5, 4, v6")
    for s in range(4):
        p("v_lshlrev_b32 v7, 1, v242"); p("v_xor_b32 v7, %d, v7" % s); p("v_xor_b32 v7, v7, v4"); p("v_lshl_add_u32 v7, v7, 6, v6")
        for sl in range(2): p("v_add_u32 v%d, %d, v7" % (WA(s, sl), QS[sl] + 36864))
    p("s_lshr_b32 s35, s%d, 1" % sWV); p("s_lshl_b32 s35, s35, 11")
    p("s_lshl_b32 s36, s62, 13")
    p("s_add_u32 s%d, s36, s35" % sOA); p("s_sub_u32 s%d, s36, s35" % sOB); p("s_add_u32 s%d, s%d, 2048" % (sOB, sOB))
    p("s_mul_i32 s%d, s%d, 18432" % (sQOFF, sWV)); p("s_xor_b32 s35, s%d, 2" % sWV); p("s_mul_i32 s%d, s35, 18432" % sQPART)
    for r in range(64, 224): p("v_mov_b32 v%d, 0" % r)
    for r in range(128): p("v_accvgpr_write_b32 a%d, 0" % r)
    Mq, Sq, dmaids = build_qproj_sched()
    qproj_prologue_items(p, Sq)
    stamp(p, 1)
    p("s_mov_b32 s%d, 4" % sCNT)
    a0 = p.mark()
    p(".p2align 3")
    p("L_qp:")
    emit_qproj_body(p, Mq, Sq, dmaids, 0)
    p("s_sub_u32 s%d, s%d, 1" % (sCNT, sCNT)); p("s_cmp_eq_u32 s%d, 0" % sCNT); p("s_cbranch_scc1 L_qp_last")
    a1 = p.mark()
    emit_qproj_body(p, Mq, Sq, dmaids, 1)
    p("s_branch L_qp")
    a2 = p.mark()
    p("L_qp_last:")
    ex = {4: lambda: kv_dma(p, "K", 0), 20: lambda: kv_dma(p, "V", 0), 36: lambda: kv_dma(p, "K", 1), 52: lambda: kv_dma(p, "K", 2)}
    emit_qproj_body(p, Mq, Sq, dmaids, 1, final=True, extra=ex)
    a3 = p.mark()
    stamp(p, 2)
    p("s_barrier")
    kv_dma(p, "V", 1); kv_dma(p, "V", 2); kv_dma(p, "K", 3)
    sc = R("s", sSCALE, 2)
    def conv8(src, dst):
        for j in range(4): p("v_pk_mul_f32 %s, %s, %s" % (R("v", src + 2 * j, 2), R("v", src + 2 * j, 2), sc))
        for j in range(4): p("v_cvt_pk_bf16_f32 v%d, v%d, v%d" % (dst + j, src + 2 * j, src + 2 * j + 1))
    def qstore(reg, head, f):
        if f % 4 == 0: p("s_add_u32 s%d, s%d, %d" % (sT1, sQOFF, 73728 * head + 1024 * f))
        p("buffer_store_dwordx4 %s, v%d, %s, s%d offen offset:%d" % (R("v", reg, 4), vL16, R("s", sQ, 4), sT1, 1024 * (f % 4)), tag="qs")
    for s in range(2): conv8(192 + 8 * s, 224 + 4 * s)
    for s in range(2): p("ds_write_b128 v%d, %s offset:%d" % (vXCH, R("v", 224 + 4 * s, 4), 1024 * s))
    for f in range(16):
        conv8(64 + 8 * f, 64 + 4 * f); qstore(64 + 4 * f, 0, f)
    for s in range(2): qstore(224 + 4 * s, 0, 16 + s)
    for j in range(8): p("v_mov_b32 v%d, v%d" % (QF(4, 0) + j, 224 + j))
    p("s_waitcnt lgkmcnt(0)"); p("s_barrier")
    p("v_xor_b32 v6, 2, v1"); p("v_mul_u32_u24 v6, 5120, v6"); p("v_add_u32 v6, v6, v%d" % vL16); p("v_add_u32 v6, %d, v6" % LDS_MISC)
    for s in range(2): p("ds_read_b128 %s, v6 offset:%d" % (R("v", QF(4, 2 + s), 4), 1024 * s))
    for f in range(16):
        t = 144 + 8 * (f % 4)
        for j in range(8): p("v_accvgpr_read_b32 v%d, a%d" % (t + j, 8 * f + j))
        conv8(t, 176 + 4 * (f % 4)); qstore(176 + 4 * (f % 4), 1, f)
    for s in range(2):
        conv8(208 + 8 * s, 232 + 4 * s); qstore(232 + 4 * s, 1, 16 + s)
    p("v_mov_b32 v6, 0x3f803f80")
    for j in range(4): p("v_accvgpr_write_b32 a%d, v6" % (aONES + j))
    p(I("WAIT_VM", want=lambda o: o.tag == "K0")); p("s_barrier")
    stamp(p, 3)
    a4 = p.mark()
    Ma, Sa, grp, chains = build_attn_sched()
    p("L_head:")
    for s in range(4): p("ds_read_b128 %s, v%d offset:0" % (R("a", KF(0, s), 4), KA(s, 0)), tag="k0")
    for s in range(4): p("ds_read_b128 %s, v%d offset:0" % (R("a", KF(1, s), 4), KA(s, 1)), tag="k1")
    for r in range(180): p("v_accvgpr_write_b32 a%d, 0" % r)
    for qt in range(4): p("v_mov_b32 v%d, 0" % LV(qt))
    T = 160
    for qt in range(5):
        for s in range(4): p(mf(R("v", T + 4 * qt, 4), R("a", KF(0, s), 4), R("v", QF(qt, s), 4), "0" if s == 0 else R("v", T + 4 * qt, 4)))
    for s in range(4): p(mf(R("v", T + 20, 4), R("a", KF(1, s), 4), R("v", QF(4, s), 4), "0" if s == 0 else R("v", T + 20, 4)))
    for qt in range(5):
        b = T + 4 * qt
        p("v_max3_f32 v%d, v%d, v%d, v%d" % (b, b, b + 1, b + 2)); p("v_max_f32 v%d, v%d, v%d" % (b, b, b + 3))
        if qt == 4:
            p("v_max3_f32 v%d, v%d, v%d, v%d" % (b, b, b + 4, b + 5)); p("v_max3_f32 v%d, v%d, v%d, v%d" % (b, b, b + 6, b + 7))
        rowmax_to_negm(p, b, qt)
    a5 = p.mark()
    p("L_enter:")
    stamp(p, 4)
    emit_attn_body(p, Ma, Sa, grp, 0, "first")
    p("s_mov_b32 s%d, 4" % sCNT)
    a6 = p.mark()
    p(".p2align 3")
    p("L_loop:")
    for i in (1, 2, 3): emit_attn_body(p, Ma, Sa, grp, i)
    p("s_sub_u32 s%d, s%d, 1" % (sCNT, sCNT)); p("s_cmp_eq_u32 s%d, 0" % sCNT); p("s_cbranch_scc1 L_tail")
    a7 = p.mark()
    emit_attn_body(p, Ma, Sa, grp, 4)
    p("s_branch L_loop")
    a8 = p.mark()
    p("L_tail:")
    def qpre():
        p("s_add_u32 s%d, s%d, 73728" % (sQOFF, sQOFF)); p("s_add_u32 s%d, s%d, 73728" % (sQPART, sQPART))
        load_q(p)
    emit_attn_body(p, Ma, Sa, grp, 4, "tail", hooks={3: qpre})
    stamp(p, 5)
    valu_rs = [] if O.rs_mfma == 9 else ([2, 3] if O.rs_mfma == 5 else [0, 1, 2, 3, 4])
    LT = 232
    for qt in range(5):
        if qt in valu_rs:
            assert qt < 4
            p("v_mov_b32 v7, v%d" % LV(qt)); p("v_permlane32_swap_b32 v%d, v7" % LV(qt)); p("v_add_f32 v%d, v%d, v7" % (LV(qt), LV(qt)))
            p("v_mov_b32 v7, v%d" % LV(qt)); p("v_permlane16_swap_b32 v%d, v7" % LV(qt)); p("v_add_f32 v%d, v%d, v7" % (LT + qt, LV(qt)))
        else:
            p("v_accvgpr_read_b32 v%d, a%d" % (LT + qt, LA(qt)))
    for dt in range(4): p("ds_write_b128 v%d, %s offset:%d" % (vXCH, R("a", OA(4, 4 + dt), 4), 1024 * dt))
    p("v_max3_f32 v237, v232, v233, v234"); p("v_max3_f32 v237, v237, v235, v236")
    p("v_add_f32 v238, v232, v233"); p("v_add_f32 v238, v238, v234"); p("v_add_f32 v238, v238, v235"); p("v_add_f32 v238, v238, v236")
    p("v_cmp_nge_f32 vcc, s%d, v238" % sBND)
    p("s_cmp_lg_u64 vcc, 0"); p("s_cselect_b32 s35, 1, 0")
    if O.force_fb: p("s_mov_b32 s35, 1")
    p("v_mov_b32 v237, s35"); p("v_mov_b32 v238, 0"); p("v_mov_b32 v239, 0")
    p("ds_write_b128 v%d, v[236:239] offset:4096" % vXCH)
    p("s_waitcnt lgkmcnt(0)"); p("s_barrier")
    p("v_xor_b32 v6, 2, v1"); p("v_mul_u32_u24 v6, 5120, v6"); p("v_add_u32 v6, v6, v%d" % vL16); p("v_add_u32 v6, %d, v6" % LDS_MISC)
    p("v_mov_b32 v7, %d" % (LDS_MISC + 4096 + 4))
    for w in range(4): p("ds_read_b32 v%d, v7 offset:%d" % (240 + w, 5120 * w))
    p("ds_read_b32 v244, v6 offset:4096")
    for dt in range(4): p("ds_read_b128 %s, v6 offset:%d" % (R("v", 144 + 4 * dt, 4), 1024 * dt))
    p("v_or_b32 v240, v240, v241"); p("v_or3_b32 v240, v240, v242, v243")
    p("v_readfirstlane_b32 s35, v240")
    p("s_andn2_b32 s35, s35, s%d" % sEXACT); p("s_cmp_lg_u32 s35, 0"); p("s_cbranch_scc1 L_fallback")
    a9 = p.mark()
    p("s_mov_b32 s%d, 0" % sEXACT)
    p("v_add_f32 v236, v236, v244")
    for qt in range(5): p("v_rcp_f32 v%d, v%d" % (LT + qt, LT + qt))
    p("v_lshl_add_u32 v245, v1, 19, v%d" % vL16)
    p("v_and_b32 v6, 1, v1"); p("v_add_u32 v6, 16, v6"); p("v_lshl_add_u32 v246, v6, 17, v%d" % vL16)
    k = 0
    for qt in range(5):
        if 0 < qt < 4: p("v_add_u32 v245, 0x20000, v245")
        p("v_mov_b32 v248, v%d" % (LT + qt)); p("v_mov_b32 v249, v%d" % (LT + qt))
        for t in range(4 if qt < 4 else 2):
            tb = 160 + 8 * (k % 4); db = 192 + 4 * (k % 8); k += 1
            for j in range(8): p("v_accvgpr_read_b32 v%d, a%d" % (tb + j, OA(qt, 2 * t) + j))
            if qt == 4:
                for j in range(8): p("v_add_f32 v%d, v%d, v%d" % (tb + j, tb + j, 144 + 8 * t + j))
            for j in range(4): p("v_pk_mul_f32 %s, %s, v[248:249]" % (R("v", tb + 2 * j, 2), R("v", tb + 2 * j, 2)))
            for j in range(4): p("v_cvt_pk_bf16_f32 v%d, v%d, v%d" % (db + j, tb + 2 * j, tb + 2 * j + 1))
            p("buffer_store_dwordx4 %s, v%d, %s, s%d offen offset:%d" % (R("v", db, 4), 245 if qt < 4 else 246, R("s", sO, 4), sOA if t < 2 else sOB, 1024 * (t % 2)), tag="o")
    p("s_add_u32 s%d, s%d, 4096" % (sOA, sOA)); p("s_add_u32 s%d, s%d, 4096" % (sOB, sOB))
    stamp(p, 6)
    p("s_add_u32 s%d, s%d, 1" % (sHEAD, sHEAD)); p("s_cmp_lt_u32 s%d, 2" % sHEAD)
    if O.prof: p("s_add_u32 s%d, s%d, 32" % (sPROF, sPROF)); p("s_cmp_lt_u32 s%d, 2" % sHEAD)
    p("s_cbranch_scc1 L_head")
    a10 = p.mark()
    p("s_waitcnt vmcnt(0)")
    p("%s_end:" % K1)
    p("s_endpgm")
    a11 = p.mark()
    p("L_fallback:")
    p("s_waitcnt vmcnt(0) lgkmcnt(0)"); p("s_barrier")
    p("s_sub_u32 s%d, s%d, 73728" % (sQOFF, sQOFF)); p("s_sub_u32 s%d, s%d, 73728" % (sQPART, sQPART))
    load_q(p)
    p("s_lshl_b32 s%d, s%d, 18" % (sKOFF, sHEAD)); p("s_add_u32 s%d, s%d, s%d" % (sKOFF, sKOFF, sW4K))
    MX = 232
    for qt in range(5): p("v_mov_b32 v%d, 0xff800000" % (MX + qt))
    p("s_mov_b32 s%d, 16" % sCNT)
    a12 = p.mark()
    p("L_fb_loop:")
    kv_dma(p, "K", 0)
    p("s_waitcnt vmcnt(0)"); p("s_barrier")
    for kt in range(4):
        for s in range(4): p("ds_read_b128 %s, v%d offset:%d" % (R("a", KF(0, s), 4), KA(s, kt // 2), (kt % 2) * 4096))
        for qt in range(5):
            for s in range(4): p(mf(R("v", T + 4 * qt, 4), R("a", KF(0, s), 4), R("v", QF(qt, s), 4), "0" if s == 0 else R("v", T + 4 * qt, 4)))
        for qt in range(5):
            b = T + 4 * qt
            p("v_max3_f32 v%d, v%d, v%d, v%d" % (MX + qt, MX + qt, b, b + 1)); p("v_max3_f32 v%d, v%d, v%d, v%d" % (MX + qt, MX + qt, b + 2, b + 3))
    p("s_waitcnt lgkmcnt(0)"); p("s_barrier")
    p("s_sub_u32 s%d, s%d, 1" % (sCNT, sCNT)); p("s_cmp_lg_u32 s%d, 0" % sCNT); p("s_cbranch_scc1 L_fb_loop")
    a13 = p.mark()
    for qt in range(5): rowmax_to_negm(p, MX + qt, qt)
    p("s_lshl_b32 s%d, s%d, 18" % (sKOFF, sHEAD)); p("s_add_u32 s%d, s%d, s%d" % (sKOFF, sKOFF, sW4K)); p("s_mov_b32 s%d, s%d" % (sVOFF, sKOFF))
    for sl in range(4): kv_dma(p, "K", sl)
    for sl in range(3): kv_dma(p, "V", sl)
    for r in range(180): p("v_accvgpr_write_b32 a%d, 0" % r)
    for qt in range(4): p("v_mov_b32 v%d, 0" % LV(qt))
    p("s_mov_b32 s%d, 1" % sEXACT)
    p("s_waitcnt vmcnt(0)"); p("s_barrier")
    for s in range(4): p("ds_read_b128 %s, v%d offset:0" % (R("a", KF(0, s), 4), KA(s, 0)), tag="k0")
    p("s_waitcnt lgkmcnt(0)")
    p("s_branch L_enter")
    a14 = p.mark()
    C = p.code
    qp = C[:a0] + (C[a0:a2]) * 3 + C[a0:a1] + C[a2:a4]
    body = C[a5:a6] + C[a6:a8] * 3 + C[a6:a7] + C[a8:a9]
    head = C[a4:a5] + body + C[a9:a10]
    fb = C[a11:a12] + C[a12:a13] * 2 + C[a13:a14]
    tr1 = qp + head + head + C[a10:a11]
    tr2 = qp + C[a4:a5] + body + fb + body + C[a9:a10] + C[a4:a5] + body + fb + body + C[a9:a10] + C[a10:a11]
    resolve([tr1, tr2])
    stats(C[:a0], "setup"); stats(C[a0:a2], "qp loop(2)"); stats(C[a2:a3], "qp last"); stats(C[a3:a4], "q epilogue"); stats(C[a4:a5], "head pro")
    stats(C[a5:a6], "body0"); stats(C[a6:a8], "loop(4)"); stats(C[a8:a9], "tail+"); stats(C[a9:a10], "epilogue")
    return p

def gen_k2():
    p = Prog()
    common_head(p, K2)
    sWO, sOO, sOUT = 4, 8, 12
    sOOFF, sWOFF, sM0, sC = 30, 31, 29, 32
    p("s_cmp_ge_u32 s3, 8"); p("s_cselect_b64 s[48:49], s[58:59], s[48:49]"); p("s_cselect_b32 s36, 1024, 0")
    p("s_and_b32 s37, s62, 7"); p("s_lshr_b32 s38, s62, 3")
    p("s_lshl_b32 s35, s37, 7"); p("s_sub_u32 s39, %d, s35" % (4096 * 1024)); srd(p, sWO, 48, 49, "s35", "s39")
    p("s_mul_i32 s35, s3, %d" % GRP_O); p("s_mul_i32 s39, s38, %d" % (9 * 131072)); p("s_add_u32 s35, s35, s39"); srd(p, sOO, 64, 65, "s35", 9 * 131072)
    p("s_mul_i32 s35, s63, %d" % (288 * 2048)); p("s_mul_i32 s39, s38, %d" % (144 * 2048)); p("s_add_u32 s35, s35, s39"); p("s_add_u32 s35, s35, s36")
    p("s_lshl_b32 s39, s37, 7"); p("s_add_u32 s35, s35, s39"); srd(p, sOUT, 60, 61, "s35", 143 * 2048 + 128)
    NB = 6
    DEPTH = 4
    p("s_lshl_b32 s%d, s%d, 15" % (sOOFF, sWV))
    p("s_lshl_b32 s%d, s%d, 20" % (sWOFF, sWV))
    p("s_mul_i32 s%d, s%d, %d" % (sM0, sWV, NB * 4096))
    OV = lambda j: 8 + j
    WD = lambda ii: 17 + ii
    RA = lambda u: 21 + u
    p("v_lshlrev_b32 v8, 4, v0")
    for j in range(1, 9): p("v_add_u32 v%d, 0x%x, v8" % (OV(j), j * 131072))
    p("v_lshrrev_b32 v6, 3, v0"); p("v_lshlrev_b32 v6, 10, v6"); p("v_lshlrev_b32 v7, 1, v3"); p("v_and_b32 v25, 7, v0"); p("v_xor_b32 v7, v7, v25"); p("v_lshl_add_u32 v%d, v7, 4, v6" % WD(0))
    for ii in range(1, 4): p("v_add_u32 v%d, %d, v%d" % (WD(ii), ii * (8192 - 1024), WD(0)))
    fl = " nt" if O.k2_nt else ""
    def BF(b, j): return 40 + 36 * b + 4 * j
    def AF(b, u): return 144 + 16 * b + 4 * u
    def ACC(j, u): return 16 * j + 4 * u
    def loads(ks):
        b = ks % NB
        L = []
        L.append(I("s_add_u32 m0, s%d, %d" % (sM0, b * 4096)))
        for ii in range(4): L.append(I("buffer_load_dwordx4 v%d, %s, s%d offen offset:%d%s lds" % (WD(ii), R("s", sWO, 4), sWOFF, 1024 * ii, fl), tag="w%d" % b))
        L.append(I("s_add_u32 s%d, s%d, 32768" % (sWOFF, sWOFF)))
        for j in range(9): L.append(I("buffer_load_dwordx4 %s, v%d, %s, s%d offen%s" % (R("v", BF(b, j), 4), OV(j), R("s", sOO, 4), sOOFF, fl), tag="o%d" % b))
        L.append(I("s_add_u32 s%d, s%d, 1024" % (sOOFF, sOOFF)))
        return L
    for ks in range(DEPTH):
        for x in loads(ks): p(x)
    p("v_lshl_add_u32 v6, v3, 2, v4"); p("v_lshrrev_b32 v7, 1, v6"); p("v_and_b32 v7, 3, v7"); p("v_xor_b32 v7, v7, v1")
    p("v_lshlrev_b32 v6, 7, v6"); p("v_lshl_add_u32 v6, v5, 3, v6"); p("v_add_u32 v6, s%d, v6" % sM0)
    for u in range(4): p("v_xor_b32 v25, %d, v7" % u); p("v_lshl_add_u32 v%d, v25, 5, v6" % RA(u))
    for r in range(144): p("v_accvgpr_write_b32 a%d, 0" % r)
    def reads(ks):
        return [I("ds_read_b64_tr_b16 %s, v%d offset:%d" % (R("a", AF(ks % 4, u) + 2 * h, 2), RA(u), (ks % NB) * 4096 + h * 2048), tag="a%d" % (ks % 4)) for u in range(4) for h in range(2)]
    def pair(ks, do_loads, do_reads):
        ld = (loads(ks + DEPTH) + loads(ks + DEPTH + 1)) if do_loads else []
        rd = []
        if do_reads:
            for k2 in (ks + 2, ks + 3):
                rd.append(I("WAIT_VM", want=lambda o, t="w%d" % (k2 % NB): o.tag == t)); rd += reads(k2)
        fill = {}
        g = 1
        for x in ld:
            fill.setdefault(g, []).append(x)
            if x.kind != "salu": g += 2
        g = 36
        for x in rd:
            fill.setdefault(g, []).append(x)
            if x.kind == "dsr": g += 2
        p(I("WAIT_VM", want=lambda o, t=("o%d" % (ks % NB), "o%d" % ((ks + 1) % NB)): o.tag in t))
        p(I("WAIT_LGKM", want=lambda o, t=("a%d" % (ks % 4), "a%d" % ((ks + 1) % 4)): o.tag in t))
        g = 0
        for j in range(9):
            for u in range(4):
                for k2 in (ks, ks + 1):
                    c = R("a", ACC(j, u), 4)
                    p(mf(c, R("a", AF(k2 % 4, u), 4), R("v", BF(k2 % NB, j), 4), c))
                    for x in fill.get(g, []): p(x)
                    g += 1
    for k2 in (0, 1):
        p(I("WAIT_VM", want=lambda o, t="w%d" % k2: o.tag == t))
        for x in reads(k2): p(x)
    p("s_mov_b32 s%d, 2" % sC)
    b0 = p.mark()
    p(".p2align 3")
    p("L2_loop:")
    for ks in range(0, 12, 2): pair(ks, True, True)
    p("s_sub_u32 s%d, s%d, 1" % (sC, sC)); p("s_cmp_lg_u32 s%d, 0" % sC); p("s_cbranch_scc1 L2_loop")
    b1 = p.mark()
    pair(24, True, True); pair(26, True, True); pair(28, False, True); pair(30, False, False)
    p("s_barrier")
    p("v_lshlrev_b32 v8, 4, v0")
    for u in range(1, 4):
        p("v_xor_b32 v6, %d, v1" % u); p("v_mul_u32_u24 v6, %d, v6" % (27 * 1024)); p("v_add_u32 v%d, v6, v8" % (8 + u))
    for u in range(1, 4):
        for j in range(9): p("ds_write_b128 v%d, %s offset:%d" % (8 + u, R("a", ACC(j, u), 4), ((u - 1) * 9 + j) * 1024))
    p("v_mul_u32_u24 v6, %d, v1" % (27 * 1024)); p("v_add_u32 v12, v6, v8")
    for j in range(9):
        for r in range(4): p("v_accvgpr_read_b32 v%d, a%d" % (40 + 4 * j + r, ACC(j, 0) + r))
    p("v_lshlrev_b32 v13, 11, v2"); p("v_lshl_add_u32 v13, v1, 5, v13"); p("v_lshl_add_u32 v13, v3, 3, v13")
    p("s_waitcnt lgkmcnt(0)"); p("s_barrier")
    for j in range(9):
        for u in range(3): p("ds_read_b128 %s, v12 offset:%d" % (R("v", 80 + 12 * j + 4 * u, 4), (u * 9 + j) * 1024))
    for j in range(9):
        for u in range(3):
            for r in range(4): p("v_add_f32 v%d, v%d, v%d" % (40 + 4 * j + r, 40 + 4 * j + r, 80 + 12 * j + 4 * u + r))
        p("v_cvt_pk_bf16_f32 v%d, v%d, v%d" % (200 + 2 * j, 40 + 4 * j, 41 + 4 * j)); p("v_cvt_pk_bf16_f32 v%d, v%d, v%d" % (201 + 2 * j, 42 + 4 * j, 43 + 4 * j))
        p("s_mov_b32 s35, %d" % (j * 16 * 2048))
        p("buffer_store_dwordx2 %s, v13, %s, s35 offen" % (R("v", 200 + 2 * j, 2), R("s", sOUT, 4)))
    p("s_waitcnt vmcnt(0)")
    p("%s_end:" % K2)
    p("s_endpgm")
    C = p.code
    resolve([C[:b0] + C[b0:b1] * 2 + C[b1:]])
    stats(C[:b0], "k2 setup"); stats(C[b0:b1], "k2 loop(12)"); stats(C[b1:], "k2 tail")
    return p

def kd(name):
    return [".p2align 6", ".amdhsa_kernel " + name, "  .amdhsa_next_free_vgpr 512", "  .amdhsa_next_free_sgpr 102", "  .amdhsa_accum_offset 256",
            "  .amdhsa_group_segment_fixed_size 0", "  .amdhsa_kernarg_size 104", "  .amdhsa_user_sgpr_count 2",
            "  .amdhsa_user_sgpr_kernarg_segment_ptr 1", "  .amdhsa_system_sgpr_workgroup_id_x 1", ".end_amdhsa_kernel"]

def main():
    ap = argparse.ArgumentParser()
    ap.add_argument("-o", default="cdna_kernels/%s.s" % NAME)
    ap.add_argument("--set", action="append", default=[])
    ap.add_argument("--only", default="")
    a = ap.parse_args()
    for s in a.set:
        k, v = s.split("="); assert hasattr(O, k), k
        setattr(O, k, int(v))
    hdr = [l.rstrip("\n") for l in open("cdna_kernels/%s.s.ref" % NAME) if l.startswith(";") and "@launch" not in l and "Override" not in l and "grid=ceil" not in l]
    hdr = hdr[:14]
    out = hdr[:]
    if a.only != "k2": out.append("; @launch kernel=%s grid=(256,1,1) block=(256,1,1) lds=163840" % K1)
    if a.only != "k1": out.append("; @launch kernel=%s grid=(256,1,1) block=(256,1,1) lds=110592" % K2)
    out += ['.amdgcn_target "amdgcn-amd-amdhsa--gfx950"', ".text"]
    out += emit(gen_k1().code); out += emit(gen_k2().code)
    out += ['.section .rodata,"a"'] + kd(K1) + kd(K2)
    open(a.o, "w").write("\n".join(out) + "\n")
if __name__ == "__main__": main()
```
